```python
import torch

def _softmax(x, axis=-1):
    return torch.softmax(x, dim=axis)

def _gelu(x):
    return torch.nn.functional.gelu(x, approximate='tanh')

def _silu(x):
    return torch.nn.functional.silu(x)

def _sigmoid(x):
    return torch.sigmoid(x)

def _layernorm(x, axis=-1, eps=1e-05):
    m = x.mean(dim=axis, keepdim=True)
    v = x.var(dim=axis, keepdim=True, unbiased=False)
    return (x - m) / torch.sqrt(v + eps)

def _scatter_add(tgt, idx, src, axis=0):
    return tgt.clone().index_add_(axis, idx, src)

def _segment_sum(src, seg, n):
    out = torch.zeros((n,) + src.shape[1:], dtype=src.dtype)
    return out.index_add_(0, seg, src)

def _pad(x, pw):
    flat = tuple((v for pair in reversed(pw) for v in pair))
    return torch.nn.functional.pad(x, flat)
kernel_name = 'gated_mix__memory_aug_recurrent_mem_tr__mixer_token_mlp__prompt'

def setup_inputs():

    _w = lambda a: (lambda t: t.to(torch.bfloat16) if t.is_floating_point() else t)(torch.as_tensor(a))

    def _A_setup():
        B, S, Dm = (1, 2048, 512)
        H, Dh = (32, 128)
        M, seg = (8, 32)
        seg = min(seg, S)
        S = S // seg * seg
        return {'x': _w((lambda *s: torch.randn(*s, dtype=torch.bfloat16) * 0.05)(B, S, Dm)), 'mem0': _w((lambda *s: torch.randn(*s, dtype=torch.bfloat16) * 0.8)(B, M, Dm)), 'Wq': _w((lambda *s: torch.randn(*s, dtype=torch.bfloat16) * 3.2)(Dm, H, Dh) * Dm ** (-0.5)), 'Wk': _w((lambda *s: torch.randn(*s, dtype=torch.bfloat16) * 3.2)(Dm, H, Dh) * Dm ** (-0.5)), 'Wv': _w((lambda *s: torch.randn(*s, dtype=torch.bfloat16) * 0.8)(Dm, H, Dh) * Dm ** (-0.5)), 'Wo': _w((lambda *s: torch.randn(*s, dtype=torch.bfloat16) * 0.8)(H, Dh, Dm) * (H * Dh) ** (-0.5)), 'seg_len': seg}
    _A_in = _A_setup()

    def _B_setup():
        B, S, D, F = (1, 2048, 512, 1792)
        return {'x': _w((lambda *s: torch.randn(*s, dtype=torch.bfloat16) * 0.05)(B, S, D)), 'w1': _w((lambda *s: torch.randn(*s, dtype=torch.bfloat16) * 0.4)(S, F) * S ** (-0.5)), 'b1': _w((lambda *s: torch.randn(*s, dtype=torch.bfloat16) * 3.2)(F) * 0.02), 'w2': _w((lambda *s: torch.randn(*s, dtype=torch.bfloat16) * 0.8)(F, S) * F ** (-0.5)), 'b2': _w((lambda *s: torch.randn(*s, dtype=torch.bfloat16) * 3.2)(S) * 0.02)}
    _B_in = _B_setup()
    return {'A_x': _A_in['x'], 'A_mem0': _A_in['mem0'], 'A_Wq': _A_in['Wq'], 'A_Wk': _A_in['Wk'], 'A_Wv': _A_in['Wv'], 'A_Wo': _A_in['Wo'], 'A_seg_len': _A_in['seg_len'], 'B_x': _B_in['x'], 'B_w1': _B_in['w1'], 'B_b1': _B_in['b1'], 'B_w2': _B_in['w2'], 'B_b2': _B_in['b2'], 'gate_w': _w((lambda *s: torch.randn(*s, dtype=torch.bfloat16) * 0.05)(512) * 16.0)}

def reference(A_x, A_mem0, A_Wq, A_Wk, A_Wv, A_Wo, A_seg_len, B_x, B_w1, B_b1, B_w2, B_b2, gate_w):

    def _A_ref(x, mem0, Wq, Wk, Wv, Wo, seg_len):
        B, S, Dm = x.shape
        H, Dh = (Wq.shape[1], Wq.shape[2])
        M = mem0.shape[1]
        scale = Dh ** (-0.5)
        n_seg = S // seg_len
        L = M + seg_len
        idx = torch.arange(L)
        mask = (idx[:, None] < M) | (idx[:, None] >= idx[None, :])
        mem = mem0
        outs = []
        for s in range(n_seg):
            xs = x[:, s * seg_len:(s + 1) * seg_len, :].clone()
            h = torch.concatenate([mem, xs], axis=1)
            q = torch.einsum('btd,dhe->bhte', h, Wq)
            k = torch.einsum('btd,dhe->bhte', h, Wk)
            v = torch.einsum('btd,dhe->bhte', h, Wv)
            scores = torch.einsum('bhqe,bhke->bhqk', q, k) * scale
            scores = torch.where(mask[None, None], scores, -1000000000.0)
            p = _softmax(scores, axis=-1)
            o = torch.einsum('bhqk,bhke->bhqe', p, v)
            o = torch.einsum('bhte,hed->btd', o, Wo)
            mem = o[:, :M, :].clone()
            outs.append(o[:, M:, :])
        return torch.concatenate(outs, axis=1)

    def _B_ref(x, w1, b1, w2, b2):
        B, S, D = x.shape
        h = _layernorm(x, axis=-1)
        u = torch.einsum('bsd,sf->bdf', h, w1) + b1
        u = _gelu(u)
        y = torch.einsum('bdf,fs->bds', u, w2) + b2
        return (lambda x, *d: x.permute(*d))(y, 0, 2, 1)
    x = A_x
    g = _sigmoid((x * gate_w).sum(-1, keepdims=True))
    a = _A_ref(x, A_mem0, A_Wq, A_Wk, A_Wv, A_Wo, A_seg_len)
    b = _B_ref(x, B_w1, B_b1, B_w2, B_b2)
    return g * a + (1 - g) * b
```

```python
from mb import *
def timeit(name, pre, code, reps, block=256):
    body = f"""
  s_load_dwordx2 s[6:7], s[0:1], 0
  v_mov_b32 v16, 0x44444444
{pre}
  s_waitcnt lgkmcnt(0)
  s_mov_b32 s20, 0
L_again:
  s_barrier
  s_memtime s[10:11]
  s_waitcnt lgkmcnt(0)
{code}
  s_memtime s[12:13]
  s_waitcnt lgkmcnt(0)
  s_add_u32 s20, s20, 1
  s_cmp_lt_u32 s20, 3
  s_cbranch_scc1 L_again
  s_sub_u32 s12, s12, s10
  v_mov_b32 v1, s12
  v_lshrrev_b32 v2, 6, v0
  v_lshlrev_b32 v2, 2, v2
  global_store_dword v2, v1, s[6:7]
  s_waitcnt vmcnt(0)
"""
    asm = wrap('k_kernel', body, vgpr=512, accum=256, grid=(1,1,1), block=(block,1,1), lds=65536, nptr=1)
    co = build(asm, 'k_kernel', 1, 'rate')
    if not ON_GPU: return
    k = AsmKernel(co, 'k_kernel'); out = DeviceBuffer(64); memset(out,0)
    k.launch((1,1,1),(block,1,1), pack_ptr_kernargs([out.ptr]), 65536); sync()
    r = out.to_numpy(np.uint32,(4,)); k.unload()
    print(f'{name}: total {r}  per-rep {(r[0]-base)/reps:.1f}', flush=True)
    return int(r[0])
base=0
b = timeit('empty','','',1); base = b or 0
```

```python
from mb import *
import rate_core as rc
timeit = rc.timeit
M=lambda n: '\n'.join(f'  v_mfma_f32_16x16x32_bf16 v[{40+4*(i%6)}:{43+4*(i%6)}], v[4:7], v[8:11], v[{40+4*(i%6)}:{43+4*(i%6)}]' for i in range(n))
pre='  v_lshlrev_b32 v72, 2, v0\n v_lshlrev_b32 v70, 4, v0\n v_lshlrev_b32 v71, 3, v0\n'
def t(name, ins, n=32): timeit(f'{name} (x{n}, minus 248)', pre, M(16)+'\n'+'\n'.join(ins(i) for i in range(n)), 1)
t('add', lambda i: f'v_add_f32 v{20+i%8}, v30, v31')
t('mul_dpp', lambda i: f'v_mul_f32_dpp v{20+i%8}, v{20+i%8}, v31 quad_perm:[2,3,2,3] row_mask:0xf bank_mask:0xf')
t('mov_dpp', lambda i: f'v_mov_b32_dpp v{20+i%8}, v30 quad_perm:[2,3,2,3] row_mask:0xf bank_mask:0xf')
t('add_dpp ror', lambda i: f'v_add_f32_dpp v{20+i%8}, v30, v30 row_ror:8 row_mask:0x3 bank_mask:0x3')
t('cvt', lambda i: f'v_cvt_pk_bf16_f32 v{20+i%8}, v30, v31')
t('pk_mul', lambda i: f'v_pk_mul_f32 v[{20+2*(i%4)}:{21+2*(i%4)}], v[30:31], v[32:33]')
t('pk_fma', lambda i: f'v_pk_fma_f32 v[{20+2*(i%4)}:{21+2*(i%4)}], v[30:31], s[22:23], v[32:33]')
t('exp', lambda i: f'v_exp_f32 v{20+i%8}, v30')
t('exp,add dep', lambda i: f'v_exp_f32 v20, v20\n s_nop 0\n v_add_f32 v20, v20, v20', 16)
t('pkfma,exp dep', lambda i: f'v_pk_fma_f32 v[20:21], v[20:21], s[22:23], v[32:33]\n v_exp_f32 v20, v20\n s_nop 0', 16)
t('perm16swap', lambda i: f'v_permlane16_swap_b32 v{20+2*(i%4)}, v{21+2*(i%4)}')
t('perm32swap', lambda i: f'v_permlane32_swap_b32 v{20+2*(i%4)}, v{21+2*(i%4)}')
t('swap,max dep', lambda i: f'v_permlane32_swap_b32 v20, v21\n v_max_f32 v22, v20, v21\n v_max_f32 v23, v20, v21', 16)
t('add,dsw128,add', lambda i: f'v_add_f32 v20, v30, v31\n ds_write_b128 v70, v[24:27]\n v_add_f32 v21, v30, v31', 1)
t('add,dsw64,add', lambda i: f'v_add_f32 v20, v30, v31\n ds_write_b64 v71, v[24:25]\n v_add_f32 v21, v30, v31', 1)
t('add,add', lambda i: f'v_add_f32 v20, v30, v31\n v_add_f32 v21, v30, v31', 1)
t('add,dsw128,wait', lambda i: f'v_add_f32 v24, v30, v31\n ds_write_b128 v70, v[24:27]\n s_waitcnt lgkmcnt(0)', 1)
t('add,dsw64,wait', lambda i: f'v_add_f32 v24, v30, v31\n ds_write_b64 v71, v[24:25]\n s_waitcnt lgkmcnt(0)', 1)
t('add,dsw32,wait', lambda i: f'v_add_f32 v24, v30, v31\n ds_write_b32 v72, v24\n s_waitcnt lgkmcnt(0)', 1)
t('add,dsw2x32,wait', lambda i: f'v_add_f32 v24, v30, v31\n ds_write2_b32 v71, v24, v25 offset0:0 offset1:1\n s_waitcnt lgkmcnt(0)', 1)
```
